```python
import torch

def _softmax(x, axis=-1):
    return torch.softmax(x, dim=axis)
def _gelu(x):
    return torch.nn.functional.gelu(x, approximate="tanh")
def _silu(x):
    return torch.nn.functional.silu(x)
def _sigmoid(x):
    return torch.sigmoid(x)
def _layernorm(x, axis=-1, eps=1e-5):
    m = x.mean(dim=axis, keepdim=True)
    v = x.var(dim=axis, keepdim=True, unbiased=False)
    return (x - m) / torch.sqrt(v + eps)
def _scatter_add(tgt, idx, src, axis=0):
    return tgt.clone().index_add_(axis, idx, src)
def _segment_sum(src, seg, n):
    out = torch.zeros((n,) + src.shape[1:], dtype=src.dtype)
    return out.index_add_(0, seg, src)
def _pad(x, pw):
    flat = tuple(v for pair in reversed(pw) for v in pair)
    return torch.nn.functional.pad(x, flat)

kernel_name = 'standalone__low_rank_proj_linformer__sampling'

def setup_inputs():

    _w = (lambda a: (lambda t: t.to(torch.bfloat16) if t.is_floating_point() else t)(torch.as_tensor(a)))
    B, H, Sq, Skv, Dh, R = 16, 32, 32, 4096, 128, 16
    return {
        "q": _w((lambda *s: torch.randn(*s, dtype=torch.bfloat16) * 0.8)(B, H, Sq, Dh)),
        "k": _w((lambda *s: torch.randn(*s, dtype=torch.bfloat16) * 0.8)(B, H, Skv, Dh)),
        "v": _w((lambda *s: torch.randn(*s, dtype=torch.bfloat16) * 0.05)(B, H, Skv, Dh)),
        "e_proj": _w((lambda *s: torch.randn(*s, dtype=torch.bfloat16) * 0.8)(R, Skv) * (Skv ** -0.5)),
        "f_proj": _w((lambda *s: torch.randn(*s, dtype=torch.bfloat16) * 0.05)(R, Skv) * (Skv ** -0.5)),
    }

def reference(q, k, v, e_proj, f_proj):
    B, H, Sq, Dh = q.shape
    kp = torch.einsum("rn,bhnd->bhrd", e_proj, k)
    vp = torch.einsum("rn,bhnd->bhrd", f_proj, v)
    scores = torch.einsum("bhqd,bhrd->bhqr", q, kp) * (Dh ** -0.5)
    p = _softmax(scores, axis=-1)
    o = torch.einsum("bhqr,bhrd->bhqd", p, vp)
    return o
```

```python
import argparse
import sys

NAME = "standalone__low_rank_proj_linformer__sampling"

HEADER = """; Kernarg layout for this problem (64 bytes, ptrs only, base s[0:1]):
"""


def gen(P=10, kflags="nt", eflags="", oflags="", stamp=False, prio=0, noE=False, ahead=20, first=3, trace=False, hmode=0, dbgspan=False):
    assert 2 <= P <= 15
    o = []
    e = o.append
    ACC, T, EB, BUF = 8, 40, 104, 112
    PR = 240
    NV = 244
    RS = 1040
    ERING = 0
    DUMP = 64 * RS
    KB = DUMP + 3 * 8192
    PB = KB + 16 * 272
    LDS = PB + 2048

    def acc(i):
        return f"v[{ACC+4*i}:{ACC+4*i+3}]"

    def R(d, j, w):
        return f"v{BUF+32*d+4*j+w}"

    def Rq(d, j):
        return f"v[{BUF+32*d+4*j}:{BUF+32*d+4*j+3}]"

    def Eq(p):
        return f"v[{EB+4*p}:{EB+4*p+3}]"

    def Tq(p, ee):
        return f"v[{T+32*p+4*ee}:{T+32*p+4*ee+3}]"

    def kpair(sp, check):
        bp, mp = (sp >> 2) & 3, sp & 3
        for j in (2 * mp, 2 * mp + 1):
            e(f"    buffer_load_dwordx4 {Rq(bp,j)}, v1, s[20:23], s36 offen offset:{j*256} {kflags}".rstrip())
        if mp == 3:
            e("    s_add_u32 s36, s36, 0x2000")
            if check and bp == 3:
                e("    s_cmp_eq_u32 s36, s41")
                e("    s_cselect_b32 s20, s44, s20")
                e("    s_cselect_b32 s21, s45, s21")
                e("    s_cselect_b32 s36, 0, s36")
                e("    s_cselect_b32 s41, -1, s41")

    def dma_prep():
        e("    s_and_b32 s50, s37, 15")
        e("    s_lshl_b32 s50, s50, 13")
        e("    s_bfe_u32 s51, s37, 0x30004")
        e("    s_lshl_b32 s51, s51, 10")
        e("    s_or_b32 s50, s50, s51")
        e("    s_and_b32 s51, s37, 63")
        e(f"    s_mul_i32 m0, s51, {RS}")
        e("    s_cmp_eq_u32 s37, 256")
        e("    s_cselect_b32 s24, s12, s24")
        e("    s_cselect_b32 s25, s13, s25")
        e("    s_add_u32 s37, s37, 1")

    def dma():
        so = "s26" if noE else "s50"
        e(f"    buffer_load_dwordx4 v2, s[24:27], {so} offen {eflags} lds".replace("  ", " ").replace(" buffer", "    buffer", 1))

    seq = []
    nvirt_e = [s for s in range(-P, 0) if s % 4 == 0]
    n_pre_e = ahead - len(nvirt_e)
    pro = []
    for s in range(-P, 0):
        if s + P == first:
            pro += [("e", u) for u in range(n_pre_e)]
        pro.append(("k", s + P))
        if s % 4 == 0:
            pro.append(("e", s // 4 + ahead))
    us = sorted(x[1] for x in pro if x[0] == "e")
    it = iter(us)
    pro = [x if x[0] == "k" else ("e", next(it)) for x in pro]
    for x in pro:
        seq += [x, x] if x[0] == "k" else [x]
    X = {}
    for m in range(4):
        n = 2 * (P - 1) + sum(1 for t in range(m - P, m) if t % 4 == 0)
        X[m] = n
    sim = list(seq)
    for s in range(0, 200):
        m = s & 3
        done = set(sim[: max(0, len(sim) - X[m])])
        last = len(sim) - 1 - sim[::-1].index(("k", s))
        assert last < len(sim) - X[m], (s, "pair not covered")
        if m == 3:
            b = s >> 2
            for r in range(16):
                assert ("e", (b >> 4) * 16 + r) in done, (s, r, "dma not covered")
        sim += [("k", s + P)] * 2
        if m == 0:
            sim.append(("e", (s >> 2) + ahead))
    assert max(X.values()) + 3 <= 63 and len(seq) <= 63
    assert ahead <= 32

    e(HEADER.rstrip("\n"))
    e(f"; @launch grid=(256,1,1) block=(128,1,1) lds={LDS}")
    e('.amdgcn_target "amdgcn-amd-amdhsa--gfx950"')
    e(".text")
    e(f".globl {NAME}_kernel")
    e(".p2align 8")
    e(f".type {NAME}_kernel,@function")
    e(f"{NAME}_kernel:")
    e("    s_cmp_ge_u32 s2, 256")
    e("    s_cbranch_scc1 L_end")
    e("    s_load_dwordx8 s[4:11], s[0:1], 0      ; q k v e")
    e("    s_load_dwordx4 s[12:15], s[0:1], 32    ; f out")
    if stamp:
        e("    s_load_dwordx2 s[54:55], s[0:1], 56")
        e("    s_memrealtime s[46:47]")
    if dbgspan:
        e("    s_load_dwordx2 s[54:55], s[0:1], 48")
        e("    s_memrealtime s[46:47]")
        e("    s_memtime s[56:57]")
    e("    v_readfirstlane_b32 s16, v0")
    e("    v_and_b32 v5, 15, v0                   ; c = l&15")
    e("    v_bfe_u32 v6, v0, 4, 2                 ; g = (l>>4)&3")
    e("    v_lshlrev_b32 v1, 11, v6")
    e("    v_lshl_add_u32 v1, v5, 4, v1")
    e("    v_and_b32 v4, 63, v0                   ; lane")
    e("    v_lshlrev_b32 v2, 4, v4                ; lane*16")
    e("    s_lshr_b32 s19, s2, 11")
    e("    s_lshl_b32 s18, s2, 21")
    e("    s_mov_b32 s22, 0x200000")
    e("    s_mov_b32 s23, 0x00020000")
    e("    s_mov_b32 s26, 0x20000")
    e("    s_mov_b32 s27, 0x00020000")
    e("    s_mov_b32 s36, 0")
    e("    s_waitcnt lgkmcnt(0)")
    e("    s_add_u32 s20, s6, s18")
    e("    s_addc_u32 s21, s7, s19")
    e("    s_mov_b32 s24, s10")
    e("    s_mov_b32 s25, s11")
    e("    s_cmp_lg_u32 s16, 0")
    e("    s_cbranch_scc1 L_common")
    for x in pro:
        if x[0] == "k":
            kpair(x[1], False)
        else:
            u = x[1]
            e(f"    s_mov_b32 m0, {(u & 63) * RS}")
            e(f"    s_mov_b32 s50, {((u & 15) << 13) | (((u >> 4) & 7) << 10)}")
            dma()
    e("L_common:")
    e(f"    s_mov_b32 s37, {ahead}")
    e("    s_add_u32 s44, s8, s18")
    e("    s_addc_u32 s45, s9, s19")
    e("    s_mov_b32 s41, 0x200000")
    e("    s_mov_b32 s39, 0x05040100")
    e("    s_mov_b32 s40, 0x07060302")
    e("    s_lshl_b32 s18, s2, 14")
    e("    s_add_u32 s32, s14, s18")
    e("    s_addc_u32 s33, s15, 0")
    e("    s_mov_b32 s34, 0x4000")
    e("    s_mov_b32 s35, 0x00020000")
    e("    v_lshlrev_b32 v7, 8, v5")
    e("    v_lshl_add_u32 v7, v6, 6, v7")
    e(f"    v_add_u32 v3, {DUMP}, v2")
    e("    v_lshlrev_b32 v4, 3, v4")
    e(f"    v_add_u32 v4, {PB}, v4")
    e("    s_cmp_lg_u32 s16, 0")
    e("    s_cbranch_scc1 L_helper")
    if prio:
        e(f"    s_setprio {prio}")
    e(f"    v_mul_u32_u24 v5, {RS}, v5")
    e("    v_lshl_add_u32 v5, v6, 4, v5")
    e("    s_mov_b32 s42, 0x2000")
    e("    s_mov_b32 s38, 0                       ; iteration")
    dma_prep()
    e("L_loop:")
    e("    s_bfe_u32 s52, s38, 0x20002")
    e(f"    s_mul_i32 s52, s52, {16*RS}")
    e("    s_and_b32 s53, s38, 3")
    e("    s_lshl_b32 s53, s53, 8")
    e("    s_add_u32 s52, s52, s53")
    e("    v_add_u32 v6, s52, v5")
    for b in range(4):
        for m in range(4):
            s = 4 * b + m
            e(f"    s_waitcnt vmcnt({X[m]})")
            kpair(s + P, True)
            if m == 0:
                dma()
            tb = T + 32 * (b & 1)
            for w in range(4):
                e(f"    v_perm_b32 v{tb+8*w+m}, {R(b,2*m+1,w)}, {R(b,2*m,w)}, s39")
                e(f"    v_perm_b32 v{tb+8*w+4+m}, {R(b,2*m+1,w)}, {R(b,2*m,w)}, s40")
                if w == 0 and m == 0:
                    e("    s_waitcnt lgkmcnt(0)")
                if w in (0, 2):
                    ee = 2 * m + w // 2
                    pp = (b - 1) & 1
                    e(f"    v_mfma_f32_16x16x32_bf16 {acc(ee)}, {Eq(pp)}, {Tq(pp,ee)}, {acc(ee)}")
            if m == 1:
                dma_prep()
            if m == 3:
                e(f"    ds_read_b128 {Eq(b&1)}, v6 offset:{b*64}")
        if b == 0:
            e("    s_and_b32 s52, s38, 31")
            e("    s_cbranch_scc0 L_handler")
            e("L_back:")
    e("    s_add_u32 s38, s38, 1")
    e("    s_cmp_lt_u32 s38, 128")
    e("    s_cbranch_scc1 L_loop")
    if trace:
        e("    s_memrealtime s[56:57]")
        e("    s_waitcnt lgkmcnt(0)")
        e("    v_writelane_b32 v0, s56, 4")
        for i in range(4):
            e(f"    v_writelane_b32 v0, s{60+i}, {i}")
    e("    s_waitcnt lgkmcnt(0)")
    for ee in range(8):
        e(f"    v_mfma_f32_16x16x32_bf16 {acc(ee)}, {Eq(1)}, {Tq(1,ee)}, {acc(ee)}")
    e("    s_waitcnt vmcnt(0)")
    e("    s_branch L_vepi")
    e("L_handler:")
    if trace:
        e("    s_memrealtime s[56:57]")
        e("    s_mov_b32 s60, s61")
        e("    s_mov_b32 s61, s62")
        e("    s_mov_b32 s62, s63")
        e("    s_waitcnt lgkmcnt(0)")
        e("    s_mov_b32 s63, s56")
    e("    s_cmp_eq_u32 s38, 0")
    e("    s_nop 4")
    e("    s_cbranch_scc1 L_zero")
    for i in range(8):
        e(f"    ds_write_b128 v3, {acc(i)} offset:{i*1024}")
    e("    v_add_u32 v3, 0x2000, v3")
    e("    s_waitcnt lgkmcnt(0)")
    e("    s_barrier")
    e(f"    ds_read_b64 v[{PR}:{PR+1}], v4 offset:1024")
    e(f"    ds_read_b64 v[{PR+2}:{PR+3}], v4 offset:{1024+512}")
    e("L_zero:")
    for i in range(32):
        e(f"    v_mov_b32 v{ACC+i}, 0")
    e("    s_branch L_back")

    e("L_helper:")
    QB, KP, KA, S = 72, 104, 120, 136
    e("    s_add_u32 s28, s4, s18                 ; q SRD")
    e("    s_addc_u32 s29, s5, 0")
    e("    s_mov_b32 s30, 0x4000")
    e("    s_mov_b32 s31, 0x00020000")
    e("    v_mul_u32_u24 v1, 1088, v6")
    e("    v_lshl_add_u32 v1, v5, 4, v1")
    e(f"    v_add_u32 v1, {KB}, v1")
    e("    v_mul_u32_u24 v2, 272, v5")
    e("    v_lshl_add_u32 v2, v6, 6, v2")
    e(f"    v_add_u32 v2, {KB}, v2")
    e("    v_mov_b32 v144, v4")
    e("    s_mov_b32 s48, 0x3db504f3              ; 128^-0.5")
    e("    s_mov_b32 s49, 0x3fb8aa3b              ; log2(e)")
    e("    s_mov_b32 s42, 0                       ; q soffset")
    if hmode == 1:
        e("    s_barrier")
        e("    s_barrier")
        e("    s_barrier")
        if stamp:
            e("    s_branch L_stamp")
        e("    s_endpgm")
    if hmode >= 2:
        e("    v_mov_b32 v150, 0")
        e("    global_load_dword v151, v150, s[44:45] nt")
        e("    global_load_dword v152, v150, s[12:13]")
        e("    global_load_dword v153, v150, s[28:29]")
    e("L_hk:")
    e("    s_barrier")
    e("    s_add_u32 s43, s42, 0x1000")
    for qt in range(2):
        for s in range(4):
            b = QB + 16 * qt + 4 * s
            e(f"    buffer_load_dwordx4 v[{b}:{b+3}], v7, s[28:31], {'s42' if qt == 0 else 's43'} offen offset:{s*16} {'nt' if hmode == 3 else ''}".rstrip())
    for i in range(8):
        e(f"    ds_read_b128 {acc(i)}, v3 offset:{i*1024}")
    e("    v_add_u32 v3, 0x2000, v3")
    e("    s_waitcnt lgkmcnt(0)")
    for i in range(4):
        for m in range(4):
            e(f"    v_cvt_pk_bf16_f32 v{KP+4*i+m}, v{ACC+8*m+i}, v{ACC+8*m+4+i}")
    for i in range(4):
        e(f"    ds_write_b128 v1, v[{KP+4*i}:{KP+4*i+3}] offset:{i*272}")
    e("    s_waitcnt lgkmcnt(0)")
    for s in range(4):
        e(f"    ds_read_b128 v[{KA+4*s}:{KA+4*s+3}], v2 offset:{s*16}")
    e("    s_waitcnt vmcnt(0) lgkmcnt(0)")
    for qt in range(2):
        for s in range(4):
            c = "0" if s == 0 else f"v[{S}:{S+3}]"
            b = QB + 16 * qt + 4 * s
            e(f"    v_mfma_f32_16x16x32_bf16 v[{S}:{S+3}], v[{KA+4*s}:{KA+4*s+3}], v[{b}:{b+3}], {c}")
        e("    s_nop 7")
        t0, t1, m0, m1 = S + 4, S + 5, S + 6, S + 7

        def rnd():
            e(f"    v_cvt_pk_bf16_f32 v{t0}, v{S}, v{S+1}")
            e(f"    v_cvt_pk_bf16_f32 v{t1}, v{S+2}, v{S+3}")
            e(f"    v_lshlrev_b32 v{S}, 16, v{t0}")
            e(f"    v_and_b32 v{S+1}, 0xffff0000, v{t0}")
            e(f"    v_lshlrev_b32 v{S+2}, 16, v{t1}")
            e(f"    v_and_b32 v{S+3}, 0xffff0000, v{t1}")

        def xl(op):
            for sw in ("v_permlane16_swap_b32", "v_permlane32_swap_b32"):
                e(f"    v_mov_b32 v{m1}, v{m0}")
                e("    s_nop 1")
                e(f"    {sw} v{m0}, v{m1}")
                e("    s_nop 1")
                e(f"    {op} v{m0}, v{m0}, v{m1}")
        rnd()
        for i in range(4):
            e(f"    v_mul_f32 v{S+i}, s48, v{S+i}")
        rnd()
        e(f"    v_max_f32 v{m0}, v{S}, v{S+1}")
        e(f"    v_max3_f32 v{m0}, v{m0}, v{S+2}, v{S+3}")
        xl("v_max_f32")
        for i in range(4):
            e(f"    v_sub_f32 v{S+i}, v{S+i}, v{m0}")
        for i in range(4):
            e(f"    v_mul_f32 v{S+i}, s49, v{S+i}")
        for i in range(4):
            e(f"    v_exp_f32 v{S+i}, v{S+i}")
        e("    s_nop 0")
        e(f"    v_add_f32 v{m0}, v{S}, v{S+1}")
        e(f"    v_add_f32 v{m1}, v{S+2}, v{S+3}")
        e(f"    v_add_f32 v{m0}, v{m0}, v{m1}")
        xl("v_add_f32")
        e(f"    v_rcp_f32 v{m0}, v{m0}")
        e("    s_nop 0")
        for i in range(4):
            e(f"    v_mul_f32 v{S+i}, v{S+i}, v{m0}")
        e(f"    v_cvt_pk_bf16_f32 v{t0}, v{S}, v{S+1}")
        e(f"    v_cvt_pk_bf16_f32 v{t1}, v{S+2}, v{S+3}")
        e(f"    ds_write_b64 v144, v[{t0}:{t1}] offset:{qt*512}")
        e("    s_waitcnt lgkmcnt(0)")
    e("    v_add_u32 v144, 0x400, v144")
    e("    s_add_u32 s42, s42, 0x2000")
    e("    s_cmp_lt_u32 s42, 0x4000")
    e("    s_cbranch_scc1 L_hk")
    e("    s_barrier")
    for i in range(8):
        e(f"    ds_read_b128 {acc(i)}, v3 offset:{i*1024}")
    e(f"    ds_read_b64 v[{PR}:{PR+1}], v4")
    e(f"    ds_read_b64 v[{PR+2}:{PR+3}], v4 offset:512")
    e("    s_mov_b32 s42, 0")
    e("    s_waitcnt lgkmcnt(0)")

    e("L_vepi:")
    VA, O1, PK = BUF, BUF + 16, BUF + 48
    e("    s_add_u32 s43, s42, 0x1000")
    e("    s_nop 4")
    for t in range(8):
        e(f"    v_cvt_pk_bf16_f32 v{VA+2*t}, v{ACC+4*t}, v{ACC+4*t+1}")
        e(f"    v_cvt_pk_bf16_f32 v{VA+2*t+1}, v{ACC+4*t+2}, v{ACC+4*t+3}")
    e("    s_nop 1")
    for t in range(8):
        e(f"    v_mfma_f32_16x16x16_bf16 v[{ACC+4*t}:{ACC+4*t+3}], v[{VA+2*t}:{VA+2*t+1}], v[{PR}:{PR+1}], 0")
    for t in range(8):
        e(f"    v_mfma_f32_16x16x16_bf16 v[{O1+4*t}:{O1+4*t+3}], v[{VA+2*t}:{VA+2*t+1}], v[{PR+2}:{PR+3}], 0")
    for i in range(4):
        for m in range(4):
            e(f"    v_cvt_pk_bf16_f32 v{PK+4*i+m}, v{ACC+8*m+i}, v{ACC+8*m+4+i}")
        e(f"    buffer_store_dwordx4 v[{PK+4*i}:{PK+4*i+3}], v7, s[32:35], s42 offen offset:{i*16} {oflags}".rstrip())
    for i in range(4):
        for m in range(4):
            e(f"    v_cvt_pk_bf16_f32 v{ACC+4*i+m}, v{O1+8*m+i}, v{O1+8*m+4+i}")
        e(f"    buffer_store_dwordx4 v[{ACC+4*i}:{ACC+4*i+3}], v7, s[32:35], s43 offen offset:{i*16} {oflags}".rstrip())
    if stamp:
        e("L_stamp:")
        e("    s_memrealtime s[48:49]")
        e("    s_getreg_b32 s50, hwreg(HW_REG_HW_ID)")
        e("    s_getreg_b32 s51, hwreg(HW_REG_XCC_ID)")
        e("    s_lshl_b32 s18, s2, 6")
        e("    s_lshr_b32 s19, s16, 1")
        e("    s_add_u32 s18, s18, s19")
        e("    s_waitcnt lgkmcnt(0)")
        e("    v_mov_b32 v40, s46")
        e("    v_mov_b32 v41, s47")
        e("    v_mov_b32 v42, s48")
        e("    v_mov_b32 v43, s49")
        e("    v_mov_b32 v44, s50")
        e("    v_mov_b32 v45, s51")
        e("    v_mov_b32 v46, s18")
        e("    s_mov_b64 exec, 1")
        e("    global_store_dwordx4 v46, v[40:43], s[54:55]")
        e("    global_store_dwordx2 v46, v[44:45], s[54:55] offset:16")
        if trace:
            e("    s_mov_b64 exec, 0xff")
            e("    v_mbcnt_lo_u32_b32 v47, -1, 0")
            e("    v_lshlrev_b32 v47, 2, v47")
            e("    s_add_u32 s18, s18, 0x10000")
            e("    v_add_u32 v47, s18, v47")
            e("    global_store_dword v47, v0, s[54:55]")
    if dbgspan:
        e("    s_memrealtime s[48:49]")
        e("    s_memtime s[58:59]")
        e("    s_waitcnt lgkmcnt(0)")
        e("    s_not_b32 s50, s46")
        e("    s_sub_u32 s51, s48, s46")
        e("    s_sub_u32 s52, s58, s56")
        e("    v_mov_b32 v40, s50")
        e("    v_mov_b32 v41, s48")
        e("    v_mov_b32 v42, s51")
        e("    v_mov_b32 v43, s52")
        e("    v_mov_b32 v46, 0")
        e("    s_mov_b64 exec, 1")
        e("    global_atomic_umax v46, v40, s[54:55]")
        e("    global_atomic_umax v46, v41, s[54:55] offset:4")
        e("    global_atomic_umax v46, v42, s[54:55] offset:8")
        e("    global_atomic_umax v46, v43, s[54:55] offset:12")
    e("L_end:")
    e("    s_endpgm")
    e('.section .rodata,"a"')
    e(".p2align 6")
    e(f".amdhsa_kernel {NAME}_kernel")
    e(f"  .amdhsa_next_free_vgpr {NV}")
    e("  .amdhsa_next_free_sgpr 64")
    e(f"  .amdhsa_accum_offset {(NV+3)//4*4}")
    e("  .amdhsa_group_segment_fixed_size 0")
    e("  .amdhsa_kernarg_size 64")
    e("  .amdhsa_user_sgpr_count 2")
    e("  .amdhsa_user_sgpr_kernarg_segment_ptr 1")
    e("  .amdhsa_system_sgpr_workgroup_id_x 1")
    e("  .amdhsa_float_denorm_mode_32 3")
    e(".end_amdhsa_kernel")
    return "\n".join(o) + "\n"


if __name__ == "__main__":
    ap = argparse.ArgumentParser()
    ap.add_argument("-P", type=int, default=10)
    ap.add_argument("--kflags", default="nt")
    ap.add_argument("--eflags", default="")
    ap.add_argument("--oflags", default="")
    ap.add_argument("--stamp", action="store_true")
    ap.add_argument("--prio", type=int, default=0)
    ap.add_argument("--noE", action="store_true")
    ap.add_argument("--ahead", type=int, default=20)
    ap.add_argument("--first", type=int, default=3)
    ap.add_argument("--trace", action="store_true")
    ap.add_argument("--hmode", type=int, default=0)
    ap.add_argument("--dbgspan", action="store_true")
    ap.add_argument("-o", default="-")
    a = ap.parse_args()
    s = gen(a.P, a.kflags, a.eflags, a.oflags, a.stamp, a.prio, a.noE, a.ahead, a.first, a.trace, a.hmode, a.dbgspan)
    if a.o == "-":
        sys.stdout.write(s)
    else:
        open(a.o, "w").write(s)
```

```python
import argparse
import sys
from gen3 import HEADER, NAME


def gen(L=15, levels=(18, 28), mode0=0, boost_it=128, ck=32, fb=None, kflags="nt", oflags="", stamp=False,
        trace=False, ahead=20, first=3, fbdry=False, aflags="sc0 sc1", xpar=None, npro=None, duty=None, strace=False):
    o = []
    e = o.append
    NL = len(levels)
    ACC, T, EB, BUF = 8, 40, 104, 112
    PR = 240
    VM, VMA = 244, 245
    NV = 246
    RS = 1040
    DUMP = 64 * RS
    KB = DUMP + 3 * 8192
    PB = KB + 16 * 272
    QL = PB + 2048
    MW = QL + 8192
    LDS = MW + 16

    def acc(i):
        return f"v[{ACC+4*i}:{ACC+4*i+3}]"

    def R(d, j, w):
        return f"v{BUF+32*d+4*j+w}"

    def Rq(d, j):
        return f"v[{BUF+32*d+4*j}:{BUF+32*d+4*j+3}]"

    def Eq(p):
        return f"v[{EB+4*p}:{EB+4*p+3}]"

    def Tq(p, ee):
        return f"v[{T+32*p+4*ee}:{T+32*p+4*ee+3}]"

    def kpair(sp, check):
        bp, mp = (sp >> 2) & 3, sp & 3
        for j in (2 * mp, 2 * mp + 1):
            e(f"    buffer_load_dwordx4 {Rq(bp,j)}, v1, s[20:23], s36 offen offset:{j*256} {kflags}".rstrip())
        if mp == 3:
            e("    s_add_u32 s36, s36, 0x2000")
            if check and bp == 3:
                e("    s_cmp_eq_u32 s36, s41")
                e("    s_cselect_b32 s20, s44, s20")
                e("    s_cselect_b32 s21, s45, s21")
                e("    s_cselect_b32 s36, 0, s36")
                e("    s_cselect_b32 s41, -1, s41")

    def dma_prep():
        e("    s_and_b32 s50, s37, 15")
        e("    s_lshl_b32 s50, s50, 13")
        e("    s_bfe_u32 s51, s37, 0x30004")
        e("    s_lshl_b32 s51, s51, 10")
        e("    s_or_b32 s50, s50, s51")
        e("    s_and_b32 s51, s37, 63")
        e(f"    s_mul_i32 m0, s51, {RS}")
        e("    s_cmp_eq_u32 s37, 256")
        e("    s_cselect_b32 s24, s12, s24")
        e("    s_cselect_b32 s25, s13, s25")
        e("    s_add_u32 s37, s37, 1")

    def dma():
        e("    buffer_load_dwordx4 v2, s[24:27], s50 offen lds")

    nvirt_e = [s for s in range(-L, 0) if s % 4 == 0]
    n_pre_e = ahead - len(nvirt_e)
    pro = []
    for s in range(-L, 0):
        if s + L == first:
            pro += [("e", u) for u in range(n_pre_e)]
        pro.append(("k", s + L))
        if s % 4 == 0:
            pro.append(("e", s // 4 + ahead))
    us = iter(sorted(x[1] for x in pro if x[0] == "e"))
    pro = [x if x[0] == "k" else ("e", next(us)) for x in pro]
    seq = []
    for x in pro:
        seq += [x, x] if x[0] == "k" else [x]
    assert len(seq) <= 63

    def imm(xk, m):
        ops = []
        for t in range(m - 40, m):
            ops += ["k", "k"]
            if t % 4 == 0:
                ops.append("e")
        n = k = 0
        for x in reversed(ops):
            if x == "k":
                if k == xk:
                    break
                k += 1
            n += 1
        return n
    X = [[imm(xk, m) for m in range(4)] for xk in levels]
    for li, xk in enumerate(levels):
        assert xk <= 2 * (L - 1)
        sim = list(seq)
        for s in range(0, 200):
            m = s & 3
            done = set(sim[: max(0, len(sim) - X[li][m])])
            last = len(sim) - 1 - sim[::-1].index(("k", s))
            assert last < len(sim) - X[li][m], (s, "pair not covered")
            if m == 3:
                b = s >> 2
                for r in range(16):
                    assert ("e", (b >> 4) * 16 + r) in done, (s, r, "dma not covered")
            sim += [("k", s + L)] * 2
            if m == 0:
                sim.append(("e", (s >> 2) + ahead))
        assert max(X[li]) + 3 <= 63

    e(HEADER.rstrip("\n"))
    e(f"; @launch grid=(256,1,1) block=(128,1,1) lds={LDS}")
    e('.amdgcn_target "amdgcn-amd-amdhsa--gfx950"')
    e(".text")
    e(f".globl {NAME}_kernel")
    e(".p2align 8")
    e(f".type {NAME}_kernel,@function")
    e(f"{NAME}_kernel:")
    e("    s_cmp_ge_u32 s2, 256")
    e("    s_cbranch_scc1 L_end")
    e("    s_load_dwordx8 s[4:11], s[0:1], 0      ; q k v e")
    e("    s_load_dwordx8 s[12:19], s[0:1], 32")
    if stamp:
        e("    s_memrealtime s[46:47]")
    e("    v_readfirstlane_b32 s3, v0")
    e("    v_and_b32 v5, 15, v0                   ; c = l&15")
    e("    v_bfe_u32 v6, v0, 4, 2                 ; g = (l>>4)&3")
    e("    v_lshlrev_b32 v1, 11, v6")
    e("    v_lshl_add_u32 v1, v5, 4, v1")
    e("    v_and_b32 v4, 63, v0                   ; lane")
    e("    v_lshlrev_b32 v2, 4, v4                ; lane*16")
    e("    s_lshr_b32 s53, s2, 11")
    e("    s_lshl_b32 s52, s2, 21")
    e("    s_mov_b32 s22, 0x200000")
    e("    s_mov_b32 s23, 0x00020000")
    e("    s_mov_b32 s26, 0x20000")
    e("    s_mov_b32 s27, 0x00020000")
    e("    s_mov_b32 s36, 0")
    e("    s_waitcnt lgkmcnt(0)")
    if strace:
        e("    s_memrealtime s[64:65]")
    e("    s_add_u32 s20, s6, s52")
    e("    s_addc_u32 s21, s7, s53")
    e("    s_mov_b32 s24, s10")
    e("    s_mov_b32 s25, s11")
    e("    s_cmp_lg_u32 s3, 0")
    e("    s_cbranch_scc1 L_common")
    nk = 0
    for x in pro:
        if x[0] == "k":
            if npro is not None and nk >= npro:
                e(f"    s_waitcnt vmcnt({npro-2+3})")
            kpair(x[1], False)
            nk += 2
        else:
            u = x[1]
            e(f"    s_mov_b32 m0, {(u & 63) * RS}")
            e(f"    s_mov_b32 s50, {((u & 15) << 13) | (((u >> 4) & 7) << 10)}")
            dma()
    if strace:
        e("    s_memrealtime s[66:67]")
        e(f"    s_waitcnt vmcnt({len(seq)-1})")
        e("    s_memrealtime s[68:69]")
        e(f"    s_waitcnt vmcnt({len(seq)-2*first-n_pre_e-1})")
        e("    s_memrealtime s[70:71]")
        e(f"    s_waitcnt vmcnt(0)")
        e("    s_memrealtime s[72:73]")
    e("L_common:")
    e(f"    s_mov_b32 s37, {ahead}")
    e("    s_add_u32 s44, s8, s52")
    e("    s_addc_u32 s45, s9, s53")
    e("    s_mov_b32 s41, 0x200000")
    e("    s_mov_b32 s39, 0x05040100")
    e("    s_mov_b32 s40, 0x07060302")
    e("    s_lshl_b32 s52, s2, 14")
    e("    s_add_u32 s32, s14, s52")
    e("    s_addc_u32 s33, s15, 0")
    e("    s_mov_b32 s34, 0x4000")
    e("    s_mov_b32 s35, 0x00020000")
    e("    v_lshlrev_b32 v7, 8, v5")
    e("    v_lshl_add_u32 v7, v6, 6, v7")
    e(f"    v_add_u32 v3, {DUMP}, v2")
    e("    v_lshlrev_b32 v4, 3, v4")
    e(f"    v_add_u32 v4, {PB}, v4")
    e(f"    v_mov_b32 v{VMA}, {MW}")
    e("    s_cmp_lg_u32 s3, 0")
    e("    s_cbranch_scc1 L_helper")
    e(f"    v_mul_u32_u24 v5, {RS}, v5")
    e("    v_lshl_add_u32 v5, v6, 4, v5")
    e("    s_mov_b32 s42, 0x2000")
    e("    s_mov_b32 s38, 0                       ; iteration")
    if xpar:
        e("    s_getreg_b32 s58, hwreg(HW_REG_XCC_ID)")
        e("    s_bitcmp1_b32 s58, 0")
        e(f"    s_cselect_b32 s58, {xpar[1]}, {xpar[0]}")
    else:
        e(f"    s_mov_b32 s58, {mode0}")
    if duty:
        e("    s_getreg_b32 s54, hwreg(HW_REG_XCC_ID)")
        e("    s_getreg_b32 s55, hwreg(HW_REG_HW_ID, 8, 4)")
        e(f"    s_mul_i32 s59, s55, {duty[2]}")
        e(f"    s_add_u32 s59, s59, {duty[0]}")
        e("    s_bitcmp1_b32 s54, 0")
        e(f"    s_cselect_b32 s55, 0, {duty[1]}")
        e("    s_add_u32 s59, s59, s55")
        e("    s_bitcmp1_b32 s54, 2")
        e(f"    s_cselect_b32 s55, {duty[3]}, 0")
        e("    s_add_u32 s59, s59, s55")
        e("    s_mov_b32 s54, 64")
    if fb:
        e(f"    v_mov_b32 v{VM}, s58")
        e(f"    ds_write_b32 v{VMA}, v{VM}")
    dma_prep()
    e("    s_branch L_dispatch")

    for li in range(NL):
        e(f"L_loop{li}:")
        e("    s_bfe_u32 s52, s38, 0x20002")
        e(f"    s_mul_i32 s52, s52, {16*RS}")
        e("    s_and_b32 s53, s38, 3")
        e("    s_lshl_b32 s53, s53, 8")
        e("    s_add_u32 s52, s52, s53")
        e("    v_add_u32 v6, s52, v5")
        for b in range(4):
            for m in range(4):
                s = 4 * b + m
                e(f"    s_waitcnt vmcnt({X[li][m]})")
                kpair(s + L, True)
                if m == 0:
                    dma()
                tb = T + 32 * (b & 1)
                for w in range(4):
                    e(f"    v_perm_b32 v{tb+8*w+m}, {R(b,2*m+1,w)}, {R(b,2*m,w)}, s39")
                    e(f"    v_perm_b32 v{tb+8*w+4+m}, {R(b,2*m+1,w)}, {R(b,2*m,w)}, s40")
                    if w == 0 and m == 0:
                        e("    s_waitcnt lgkmcnt(0)")
                    if w in (0, 2):
                        ee = 2 * m + w // 2
                        pp = (b - 1) & 1
                        e(f"    v_mfma_f32_16x16x32_bf16 {acc(ee)}, {Eq(pp)}, {Tq(pp,ee)}, {acc(ee)}")
                if m == 1:
                    dma_prep()
                if m == 3:
                    e(f"    ds_read_b128 {Eq(b&1)}, v6 offset:{b*64}")
                    if b == 2 and fb:
                        e(f"    ds_read_b32 v{VM}, v{VMA}")
                if b == 3 and m == 2 and fb:
                    e(f"    v_readfirstlane_b32 s58, v{VM}")
            if b == 0:
                e(f"    s_and_b32 s52, s38, {ck-1}")
                e(f"    s_cbranch_scc1 L_back{li}")
                if trace:
                    e("    s_and_b32 s52, s38, 31")
                    e(f"    s_cbranch_scc1 L_notr{li}")
                    e("    s_memrealtime s[56:57]")
                    e("    s_mov_b32 s60, s61")
                    e("    s_mov_b32 s61, s62")
                    e("    s_mov_b32 s62, s63")
                    e("    s_waitcnt lgkmcnt(0)")
                    e("    s_mov_b32 s63, s56")
                    e(f"L_notr{li}:")
                if ck != 32:
                    e("    s_and_b32 s52, s38, 31")
                    e(f"    s_cbranch_scc0 L_ph{li}")
                    e("    s_barrier")
                    e(f"    s_branch L_back{li}")
                    e(f"L_ph{li}:")
                e("    s_cmp_eq_u32 s38, 0")
                e("    s_nop 4")
                e(f"    s_cbranch_scc1 L_zero{li}")
                for i in range(8):
                    e(f"    ds_write_b128 v3, {acc(i)} offset:{i*1024}")
                e("    v_add_u32 v3, 0x2000, v3")
                e("    s_waitcnt lgkmcnt(0)")
                e("    s_barrier")
                e(f"    ds_read_b64 v[{PR}:{PR+1}], v4 offset:1024")
                e(f"    ds_read_b64 v[{PR+2}:{PR+3}], v4 offset:{1024+512}")
                e(f"L_zero{li}:")
                for i in range(32):
                    e(f"    v_mov_b32 v{ACC+i}, 0")
                e(f"L_back{li}:")
        e("    s_add_u32 s38, s38, 1")
        if duty:
            e("    s_add_u32 s54, s54, s59")
            e("    s_lshr_b32 s58, s54, 7")
            e("    s_and_b32 s54, s54, 127")
        if li == NL - 1:
            e("L_dispatch:")
            if boost_it < 128:
                e(f"    s_cmp_ge_u32 s38, {boost_it}")
                e(f"    s_cselect_b32 s58, {NL-1}, s58")
            e("    s_cmp_ge_u32 s38, 128")
            e("    s_cbranch_scc1 L_done")
            for lj in range(NL - 1):
                e(f"    s_cmp_eq_u32 s58, {lj}")
                e(f"    s_cbranch_scc1 L_loop{lj}")
            e(f"    s_branch L_loop{NL-1}")
        else:
            e(f"    s_cmp_ge_u32 s38, {min(boost_it,128)}")
            e("    s_cbranch_scc1 L_dispatch")
            e(f"    s_cmp_eq_u32 s58, {li}")
            e(f"    s_cbranch_scc1 L_loop{li}")
            e("    s_branch L_dispatch")
    e("L_done:")
    if trace:
        e("    s_memrealtime s[56:57]")
        e("    s_waitcnt lgkmcnt(0)")
        e("    v_writelane_b32 v0, s56, 4")
        for i in range(4):
            e(f"    v_writelane_b32 v0, s{60+i}, {i}")
        if strace:
            for i in range(5):
                e(f"    v_writelane_b32 v0, s{64+2*i}, {i}")
    e("    s_waitcnt lgkmcnt(0)")
    for ee in range(8):
        e(f"    v_mfma_f32_16x16x32_bf16 {acc(ee)}, {Eq(1)}, {Tq(1,ee)}, {acc(ee)}")
    e("    s_waitcnt vmcnt(0)")
    e("    s_branch L_vepi")

    e("L_helper:")
    QB, KP, KA, S = 72, 104, 120, 136
    NCK = 128 // ck - 1
    PER = 32 // ck
    e("    s_add_u32 s28, s4, s52                 ; q SRD")
    e("    s_addc_u32 s29, s5, 0")
    e("    s_mov_b32 s30, 0x4000")
    e("    s_mov_b32 s31, 0x00020000")
    e("    v_mul_u32_u24 v1, 1088, v6")
    e("    v_lshl_add_u32 v1, v5, 4, v1")
    e(f"    v_add_u32 v1, {KB}, v1")
    e("    v_mul_u32_u24 v145, 272, v5")
    e("    v_lshl_add_u32 v145, v6, 6, v145")
    e(f"    v_add_u32 v145, {KB}, v145")
    e("    v_mov_b32 v144, v4")
    e(f"    v_add_u32 v146, {QL}, v7")
    e("    v_mov_b32 v147, 0")
    e("    v_mov_b32 v148, 1")
    e("    s_mov_b32 s48, 0x3db504f3              ; 128^-0.5")
    e("    s_mov_b32 s49, 0x3fb8aa3b              ; log2(e)")
    e("    s_mov_b32 s42, 0                       ; q soffset")
    e("    s_mov_b32 s38, 0                       ; checkpoint")
    e("L_hloop:")
    e(f"    s_cmp_ge_u32 s38, {NCK}")
    e(f"    s_cbranch_scc1 {'L_stamp' if stamp else 'L_end'}")
    e("    s_barrier")
    e("    s_add_u32 s38, s38, 1")
    if fb:
        e("    s_mov_b64 exec, 1")
        if aflags == "scalar":
            e("    s_mov_b32 s52, 1")
            e("    s_lshl_b32 s54, s38, 2")
            e("    s_atomic_add s52, s[16:17], s54 glc")
            e("    s_waitcnt lgkmcnt(0)")
        else:
            e(f"    global_atomic_add v149, v147, v148, s[16:17] {aflags}")
            e("    v_add_u32 v147, 4, v147")
            e("    s_waitcnt vmcnt(0)")
            e("    v_readfirstlane_b32 s52, v149")
        if trace:
            e("    v_mov_b32 v0, s52")
        e("    s_mov_b32 s53, 1")
        e(f"    s_cmp_lt_u32 s52, {fb[0]}")
        e("    s_cselect_b32 s53, 0, s53")
        e(f"    s_cmp_ge_u32 s52, {fb[1]}")
        e("    s_cselect_b32 s53, 2, s53")
        if fbdry:
            e(f"    s_mov_b32 s53, {mode0}")
        e("    v_mov_b32 v149, s53")
        e(f"    ds_write_b32 v{VMA}, v149")
        e("    s_mov_b64 exec, -1")
    if PER > 1:
        e(f"    s_and_b32 s52, s38, {PER-1}")
        e("    s_cbranch_scc1 L_hloop")
    e(f"    s_cmp_eq_u32 s38, {3*PER}")
    e("    s_cbranch_scc1 L_hv")
    e(f"    s_mov_b32 m0, {QL}")
    e("    s_add_u32 s43, s42, 0x1000")
    for i in range(4):
        e(f"    buffer_load_dwordx4 v2, s[28:31], s42 offen offset:{i*1024} nt lds")
    e(f"    s_mov_b32 m0, {QL+4096}")
    e("    s_nop 0")
    for i in range(4):
        e(f"    buffer_load_dwordx4 v2, s[28:31], s43 offen offset:{i*1024} nt lds")
    for i in range(8):
        e(f"    ds_read_b128 {acc(i)}, v3 offset:{i*1024}")
    e("    v_add_u32 v3, 0x2000, v3")
    e("    s_waitcnt lgkmcnt(0)")
    for i in range(4):
        for m in range(4):
            e(f"    v_cvt_pk_bf16_f32 v{KP+4*i+m}, v{ACC+8*m+i}, v{ACC+8*m+4+i}")
    for i in range(4):
        e(f"    ds_write_b128 v1, v[{KP+4*i}:{KP+4*i+3}] offset:{i*272}")
    e("    s_waitcnt vmcnt(0) lgkmcnt(0)")
    for s in range(4):
        e(f"    ds_read_b128 v[{KA+4*s}:{KA+4*s+3}], v145 offset:{s*16}")
    for qt in range(2):
        for s in range(4):
            b = QB + 16 * qt + 4 * s
            e(f"    ds_read_b128 v[{b}:{b+3}], v146 offset:{qt*4096+s*16}")
    e("    s_waitcnt lgkmcnt(0)")
    for qt in range(2):
        for s in range(4):
            c = "0" if s == 0 else f"v[{S}:{S+3}]"
            b = QB + 16 * qt + 4 * s
            e(f"    v_mfma_f32_16x16x32_bf16 v[{S}:{S+3}], v[{KA+4*s}:{KA+4*s+3}], v[{b}:{b+3}], {c}")
        e("    s_nop 7")
        t0, t1, m0, m1 = S + 4, S + 5, S + 6, S + 7

        def rnd():
            e(f"    v_cvt_pk_bf16_f32 v{t0}, v{S}, v{S+1}")
            e(f"    v_cvt_pk_bf16_f32 v{t1}, v{S+2}, v{S+3}")
            e(f"    v_lshlrev_b32 v{S}, 16, v{t0}")
            e(f"    v_and_b32 v{S+1}, 0xffff0000, v{t0}")
            e(f"    v_lshlrev_b32 v{S+2}, 16, v{t1}")
            e(f"    v_and_b32 v{S+3}, 0xffff0000, v{t1}")

        def xl(op):
            for sw in ("v_permlane16_swap_b32", "v_permlane32_swap_b32"):
                e(f"    v_mov_b32 v{m1}, v{m0}")
                e("    s_nop 1")
                e(f"    {sw} v{m0}, v{m1}")
                e("    s_nop 1")
                e(f"    {op} v{m0}, v{m0}, v{m1}")
        rnd()
        for i in range(4):
            e(f"    v_mul_f32 v{S+i}, s48, v{S+i}")
        rnd()
        e(f"    v_max_f32 v{m0}, v{S}, v{S+1}")
        e(f"    v_max3_f32 v{m0}, v{m0}, v{S+2}, v{S+3}")
        xl("v_max_f32")
        for i in range(4):
            e(f"    v_sub_f32 v{S+i}, v{S+i}, v{m0}")
        for i in range(4):
            e(f"    v_mul_f32 v{S+i}, s49, v{S+i}")
        for i in range(4):
            e(f"    v_exp_f32 v{S+i}, v{S+i}")
        e("    s_nop 0")
        e(f"    v_add_f32 v{m0}, v{S}, v{S+1}")
        e(f"    v_add_f32 v{m1}, v{S+2}, v{S+3}")
        e(f"    v_add_f32 v{m0}, v{m0}, v{m1}")
        xl("v_add_f32")
        e(f"    v_rcp_f32 v{m0}, v{m0}")
        e("    s_nop 0")
        for i in range(4):
            e(f"    v_mul_f32 v{S+i}, v{S+i}, v{m0}")
        e(f"    v_cvt_pk_bf16_f32 v{t0}, v{S}, v{S+1}")
        e(f"    v_cvt_pk_bf16_f32 v{t1}, v{S+2}, v{S+3}")
        e(f"    ds_write_b64 v144, v[{t0}:{t1}] offset:{qt*512}")
        e("    s_waitcnt lgkmcnt(0)")
    e("    v_add_u32 v144, 0x400, v144")
    e("    s_add_u32 s42, s42, 0x2000")
    e("    s_branch L_hloop")
    e("L_hv:")
    for i in range(8):
        e(f"    ds_read_b128 {acc(i)}, v3 offset:{i*1024}")
    e(f"    ds_read_b64 v[{PR}:{PR+1}], v4")
    e(f"    ds_read_b64 v[{PR+2}:{PR+3}], v4 offset:512")
    e("    s_mov_b32 s42, 0")
    e("    s_waitcnt lgkmcnt(0)")

    e("L_vepi:")
    VA, O1, PK = 152, 168, 200
    e("    s_add_u32 s43, s42, 0x1000")
    e("    s_nop 4")
    for t in range(8):
        e(f"    v_cvt_pk_bf16_f32 v{VA+2*t}, v{ACC+4*t}, v{ACC+4*t+1}")
        e(f"    v_cvt_pk_bf16_f32 v{VA+2*t+1}, v{ACC+4*t+2}, v{ACC+4*t+3}")
    e("    s_nop 1")
    for t in range(8):
        e(f"    v_mfma_f32_16x16x16_bf16 v[{ACC+4*t}:{ACC+4*t+3}], v[{VA+2*t}:{VA+2*t+1}], v[{PR}:{PR+1}], 0")
    for t in range(8):
        e(f"    v_mfma_f32_16x16x16_bf16 v[{O1+4*t}:{O1+4*t+3}], v[{VA+2*t}:{VA+2*t+1}], v[{PR+2}:{PR+3}], 0")
    for i in range(4):
        for m in range(4):
            e(f"    v_cvt_pk_bf16_f32 v{PK+4*i+m}, v{ACC+8*m+i}, v{ACC+8*m+4+i}")
        e(f"    buffer_store_dwordx4 v[{PK+4*i}:{PK+4*i+3}], v7, s[32:35], s42 offen offset:{i*16} {oflags}".rstrip())
    for i in range(4):
        for m in range(4):
            e(f"    v_cvt_pk_bf16_f32 v{ACC+4*i+m}, v{O1+8*m+i}, v{O1+8*m+4+i}")
        e(f"    buffer_store_dwordx4 v[{ACC+4*i}:{ACC+4*i+3}], v7, s[32:35], s43 offen offset:{i*16} {oflags}".rstrip())
    if PER > 1:
        e("    s_cmp_lg_u32 s3, 0")
        e("    s_cbranch_scc1 L_hloop")
    if stamp:
        e("L_stamp:")
        e("    s_memrealtime s[48:49]")
        e("    s_getreg_b32 s50, hwreg(HW_REG_HW_ID)")
        e("    s_getreg_b32 s51, hwreg(HW_REG_XCC_ID)")
        e("    s_lshl_b32 s52, s2, 6")
        e("    s_lshr_b32 s53, s3, 1")
        e("    s_add_u32 s52, s52, s53")
        e("    s_waitcnt lgkmcnt(0)")
        e("    v_mov_b32 v40, s46")
        e("    v_mov_b32 v41, s47")
        e("    v_mov_b32 v42, s48")
        e("    v_mov_b32 v43, s49")
        e("    v_mov_b32 v44, s50")
        e("    v_mov_b32 v45, s51")
        e("    v_mov_b32 v46, s52")
        e("    s_mov_b64 exec, 1")
        e("    global_store_dwordx4 v46, v[40:43], s[18:19]")
        e("    global_store_dwordx2 v46, v[44:45], s[18:19] offset:16")
        if trace:
            e("    s_mov_b64 exec, 0xff")
            e("    v_mbcnt_lo_u32_b32 v47, -1, 0")
            e("    v_lshlrev_b32 v47, 2, v47")
            e("    s_add_u32 s52, s52, 0x10000")
            e("    v_add_u32 v47, s52, v47")
            e("    global_store_dword v47, v0, s[18:19]")
    e("L_end:")
    e("    s_endpgm")
    e('.section .rodata,"a"')
    e(".p2align 6")
    e(f".amdhsa_kernel {NAME}_kernel")
    e(f"  .amdhsa_next_free_vgpr {NV}")
    e("  .amdhsa_next_free_sgpr 80")
    e(f"  .amdhsa_accum_offset {(NV+3)//4*4}")
    e("  .amdhsa_group_segment_fixed_size 0")
    e("  .amdhsa_kernarg_size 64")
    e("  .amdhsa_user_sgpr_count 2")
    e("  .amdhsa_user_sgpr_kernarg_segment_ptr 1")
    e("  .amdhsa_system_sgpr_workgroup_id_x 1")
    e("  .amdhsa_float_denorm_mode_32 3")
    e(".end_amdhsa_kernel")
    return "\n".join(o) + "\n"


def ints(s):
    return tuple(int(x) for x in s.split(",")) if s else None


if __name__ == "__main__":
    ap = argparse.ArgumentParser()
    ap.add_argument("-L", type=int, default=15)
    ap.add_argument("--levels", default="18,28")
    ap.add_argument("--mode0", type=int, default=0)
    ap.add_argument("--boost", type=int, default=128)
    ap.add_argument("--ck", type=int, default=32)
    ap.add_argument("--fb", default=None)
    ap.add_argument("--fbdry", action="store_true")
    ap.add_argument("--aflags", default="sc0 sc1")
    ap.add_argument("--xpar", default=None)
    ap.add_argument("--npro", type=int, default=None)
    ap.add_argument("--oflags", default="")
    ap.add_argument("--stamp", action="store_true")
    ap.add_argument("--trace", action="store_true")
    ap.add_argument("--ahead", type=int, default=20)
    ap.add_argument("--first", type=int, default=3)
    ap.add_argument("--duty", default=None)
    ap.add_argument("--strace", action="store_true")
    ap.add_argument("-o", default="-")
    a = ap.parse_args()
    s = gen(a.L, ints(a.levels), a.mode0, a.boost, a.ck, ints(a.fb), "nt", a.oflags, a.stamp, a.trace, a.ahead,
            a.first, a.fbdry, a.aflags, ints(a.xpar), a.npro, ints(a.duty), a.strace)
    if a.o == "-":
        sys.stdout.write(s)
    else:
        open(a.o, "w").write(s)
```

```python
import argparse
import sys
from gen3 import HEADER, NAME


def gen(L=15, levels=(18, 28), mode0=0, boost_it=128, ck=32, fb=None, kflags="nt", oflags="", stamp=False,
        trace=False, ahead=20, first=3, fbdry=False, aflags="sc0 sc1", xpar=None, npro=None, duty=None, strace=False, two=None, duty0=58, ctl=None, nlead=32, pi=None, rflags='nt'):
    if pi:
        ctl = True
    o = []
    e = o.append
    if two:
        levels = two
    NL = 1 if two else len(levels)
    ACC, T, EB, BUF = 8, 40, 104, 112
    PR = 240
    VM, VMA = 244, 245
    NV = 246
    RS = 1040
    DUMP = 64 * RS
    KB = DUMP + 3 * 8192
    PB = KB + 16 * 272
    QL = PB + 2048
    MW = QL + 8192
    LDS = MW + 16

    def acc(i):
        return f"v[{ACC+4*i}:{ACC+4*i+3}]"

    def R(d, j, w):
        return f"v{BUF+32*d+4*j+w}"

    def Rq(d, j):
        return f"v[{BUF+32*d+4*j}:{BUF+32*d+4*j+3}]"

    def Eq(p):
        return f"v[{EB+4*p}:{EB+4*p+3}]"

    def Tq(p, ee):
        return f"v[{T+32*p+4*ee}:{T+32*p+4*ee+3}]"

    def kpair(sp, check):
        bp, mp = (sp >> 2) & 3, sp & 3
        for j in (2 * mp, 2 * mp + 1):
            e(f"    buffer_load_dwordx4 {Rq(bp,j)}, v1, s[20:23], s36 offen offset:{j*256} {kflags}".rstrip())
        if mp == 3:
            e("    s_add_u32 s36, s36, 0x2000")
            if check and bp == 3:
                e("    s_cmp_eq_u32 s36, s41")
                e("    s_cselect_b32 s20, s44, s20")
                e("    s_cselect_b32 s21, s45, s21")
                e("    s_cselect_b32 s36, 0, s36")
                e("    s_cselect_b32 s41, -1, s41")

    def dma_prep():
        e("    s_and_b32 s50, s37, 15")
        e("    s_lshl_b32 s50, s50, 13")
        e("    s_bfe_u32 s51, s37, 0x30004")
        e("    s_lshl_b32 s51, s51, 10")
        e("    s_or_b32 s50, s50, s51")
        e("    s_and_b32 s51, s37, 63")
        e(f"    s_mul_i32 m0, s51, {RS}")
        e("    s_cmp_eq_u32 s37, 256")
        e("    s_cselect_b32 s24, s12, s24")
        e("    s_cselect_b32 s25, s13, s25")
        e("    s_add_u32 s37, s37, 1")

    def dma():
        e("    buffer_load_dwordx4 v2, s[24:27], s50 offen lds")

    nvirt_e = [s for s in range(-L, 0) if s % 4 == 0]
    n_pre_e = ahead - len(nvirt_e)
    pro = []
    for s in range(-L, 0):
        if s + L == first:
            pro += [("e", u) for u in range(n_pre_e)]
        pro.append(("k", s + L))
        if s % 4 == 0:
            pro.append(("e", s // 4 + ahead))
    us = iter(sorted(x[1] for x in pro if x[0] == "e"))
    pro = [x if x[0] == "k" else ("e", next(us)) for x in pro]
    seq = []
    for x in pro:
        seq += [x, x] if x[0] == "k" else [x]
    assert len(seq) <= 63

    def imm(xk, m):
        ops = []
        for t in range(m - 40, m):
            ops += ["k", "k"]
            if t % 4 == 0:
                ops.append("e")
        n = k = 0
        for x in reversed(ops):
            if x == "k":
                if k == xk:
                    break
                k += 1
            n += 1
        return n
    X = [[imm(xk, m) for m in range(4)] for xk in levels]
    for li, xk in enumerate(levels):
        assert xk <= 2 * (L - 1)
        sim = list(seq)
        for s in range(0, 200):
            m = s & 3
            done = set(sim[: max(0, len(sim) - X[li][m])])
            last = len(sim) - 1 - sim[::-1].index(("k", s))
            assert last < len(sim) - X[li][m], (s, "pair not covered")
            if m == 3:
                b = s >> 2
                for r in range(16):
                    assert ("e", (b >> 4) * 16 + r) in done, (s, r, "dma not covered")
            sim += [("k", s + L)] * 2
            if m == 0:
                sim.append(("e", (s >> 2) + ahead))
        assert max(X[li]) + 3 <= 63

    e(HEADER.rstrip("\n"))
    e(f"; @launch grid=(256,1,1) block=(128,1,1) lds={LDS}")
    e('.amdgcn_target "amdgcn-amd-amdhsa--gfx950"')
    e(".text")
    e(f".globl {NAME}_kernel")
    e(".p2align 8")
    e(f".type {NAME}_kernel,@function")
    e(f"{NAME}_kernel:")
    e("    s_cmp_ge_u32 s2, 256")
    e("    s_cbranch_scc1 L_end")
    e("    s_load_dwordx8 s[4:11], s[0:1], 0      ; q k v e")
    e("    s_load_dwordx8 s[12:19], s[0:1], 32")
    if stamp:
        e("    s_memrealtime s[46:47]")
    e("    v_readfirstlane_b32 s3, v0")
    e("    v_and_b32 v5, 15, v0                   ; c = l&15")
    e("    v_bfe_u32 v6, v0, 4, 2                 ; g = (l>>4)&3")
    e("    v_lshlrev_b32 v1, 11, v6")
    e("    v_lshl_add_u32 v1, v5, 4, v1")
    e("    v_and_b32 v4, 63, v0                   ; lane")
    e("    v_lshlrev_b32 v2, 4, v4                ; lane*16")
    e("    s_lshr_b32 s53, s2, 11")
    e("    s_lshl_b32 s52, s2, 21")
    e("    s_mov_b32 s22, 0x200000")
    e("    s_mov_b32 s23, 0x00020000")
    e("    s_mov_b32 s26, 0x20000")
    e("    s_mov_b32 s27, 0x00020000")
    e("    s_mov_b32 s36, 0")
    e("    s_waitcnt lgkmcnt(0)")
    if strace:
        e("    s_memrealtime s[64:65]")
    e("    s_add_u32 s20, s6, s52")
    e("    s_addc_u32 s21, s7, s53")
    e("    s_mov_b32 s24, s10")
    e("    s_mov_b32 s25, s11")
    e("    s_cmp_lg_u32 s3, 0")
    e("    s_cbranch_scc1 L_common")
    nk = 0
    for x in pro:
        if x[0] == "k":
            if npro is not None and nk >= npro:
                e(f"    s_waitcnt vmcnt({npro-2+3})")
            kpair(x[1], False)
            nk += 2
        else:
            u = x[1]
            e(f"    s_mov_b32 m0, {(u & 63) * RS}")
            e(f"    s_mov_b32 s50, {((u & 15) << 13) | (((u >> 4) & 7) << 10)}")
            dma()
    if strace:
        e("    s_memrealtime s[66:67]")
        e(f"    s_waitcnt vmcnt({len(seq)-1})")
        e("    s_memrealtime s[68:69]")
        e(f"    s_waitcnt vmcnt({len(seq)-2*first-n_pre_e-1})")
        e("    s_memrealtime s[70:71]")
        e(f"    s_waitcnt vmcnt(0)")
        e("    s_memrealtime s[72:73]")
    e("L_common:")
    e(f"    s_mov_b32 s37, {ahead}")
    e("    s_add_u32 s44, s8, s52")
    e("    s_addc_u32 s45, s9, s53")
    e("    s_mov_b32 s41, 0x200000")
    e("    s_mov_b32 s39, 0x05040100")
    e("    s_mov_b32 s40, 0x07060302")
    e("    s_lshl_b32 s52, s2, 14")
    e("    s_add_u32 s32, s14, s52")
    e("    s_addc_u32 s33, s15, 0")
    e("    s_mov_b32 s34, 0x4000")
    e("    s_mov_b32 s35, 0x00020000")
    e("    v_lshlrev_b32 v7, 8, v5")
    e("    v_lshl_add_u32 v7, v6, 6, v7")
    e(f"    v_add_u32 v3, {DUMP}, v2")
    e("    v_lshlrev_b32 v4, 3, v4")
    e(f"    v_add_u32 v4, {PB}, v4")
    e(f"    v_mov_b32 v{VMA}, {MW}")
    e("    s_cmp_lg_u32 s3, 0")
    e("    s_cbranch_scc1 L_helper")
    e(f"    v_mul_u32_u24 v5, {RS}, v5")
    e("    v_lshl_add_u32 v5, v6, 4, v5")
    e("    s_mov_b32 s42, 0x2000")
    e("    s_mov_b32 s38, 0                       ; iteration")
    if xpar:
        e("    s_getreg_b32 s58, hwreg(HW_REG_XCC_ID)")
        e("    s_bitcmp1_b32 s58, 0")
        e(f"    s_cselect_b32 s58, {xpar[1]}, {xpar[0]}")
    else:
        e(f"    s_mov_b32 s58, {mode0}")
    if duty:
        e("    s_getreg_b32 s54, hwreg(HW_REG_XCC_ID)")
        e("    s_getreg_b32 s55, hwreg(HW_REG_HW_ID, 8, 4)")
        e(f"    s_mul_i32 s59, s55, {duty[2]}")
        e(f"    s_add_u32 s59, s59, {duty[0]}")
        e("    s_bitcmp1_b32 s54, 0")
        e(f"    s_cselect_b32 s55, 0, {duty[1]}")
        e("    s_add_u32 s59, s59, s55")
        e("    s_bitcmp1_b32 s54, 2")
        e(f"    s_cselect_b32 s55, {duty[3]}, 0")
        e("    s_add_u32 s59, s59, s55")
        e("    s_mov_b32 s54, 64")
    if two:
        if not duty:
            e(f"    s_mov_b32 s59, {duty0}")
        e("    s_mul_i32 s54, s2, 37")
        e("    s_lshr_b32 s54, s54, 1")
        e("    s_and_b32 s54, s54, 127")
        e("    s_mov_b64 vcc, 0")
        if ctl:
            e(f"    v_mov_b32 v{VM}, s59")
            e(f"    ds_write_b32 v{VMA}, v{VM}")
    if fb:
        e(f"    v_mov_b32 v{VM}, s58")
        e(f"    ds_write_b32 v{VMA}, v{VM}")
    dma_prep()
    e("    s_branch L_dispatch")

    for li in range(NL):
        e(f"L_loop{li}:")
        e("    s_bfe_u32 s52, s38, 0x20002")
        e(f"    s_mul_i32 s52, s52, {16*RS}")
        e("    s_and_b32 s53, s38, 3")
        e("    s_lshl_b32 s53, s53, 8")
        e("    s_add_u32 s52, s52, s53")
        e("    v_add_u32 v6, s52, v5")
        for b in range(4):
            for m in range(4):
                s = 4 * b + m
                if two:
                    e(f"    s_waitcnt vmcnt({X[1][m]})")
                    e(f"    s_cbranch_vccnz L_w{s}")
                    e(f"    s_waitcnt vmcnt({X[0][m]})")
                    e(f"L_w{s}:")
                else:
                    e(f"    s_waitcnt vmcnt({X[li][m]})")
                kpair(s + L, True)
                if m == 0:
                    dma()
                tb = T + 32 * (b & 1)
                for w in range(4):
                    e(f"    v_perm_b32 v{tb+8*w+m}, {R(b,2*m+1,w)}, {R(b,2*m,w)}, s39")
                    e(f"    v_perm_b32 v{tb+8*w+4+m}, {R(b,2*m+1,w)}, {R(b,2*m,w)}, s40")
                    if w == 0 and m == 0:
                        e("    s_waitcnt lgkmcnt(0)")
                    if w in (0, 2):
                        ee = 2 * m + w // 2
                        pp = (b - 1) & 1
                        e(f"    v_mfma_f32_16x16x32_bf16 {acc(ee)}, {Eq(pp)}, {Tq(pp,ee)}, {acc(ee)}")
                if m == 1:
                    dma_prep()
                if m == 3:
                    e(f"    ds_read_b128 {Eq(b&1)}, v6 offset:{b*64}")
                    if b == 2 and (fb or ctl):
                        e(f"    ds_read_b32 v{VM}, v{VMA}")
                if b == 3 and m == 2 and fb:
                    e(f"    v_readfirstlane_b32 s58, v{VM}")
                if b == 3 and m == 2 and ctl:
                    e(f"    v_readfirstlane_b32 s59, v{VM}")
            if b == 0:
                e(f"    s_and_b32 s52, s38, {ck-1}")
                e(f"    s_cbranch_scc1 L_back{li}")
                if trace:
                    e("    s_and_b32 s52, s38, 31")
                    e(f"    s_cbranch_scc1 L_notr{li}")
                    e("    s_memrealtime s[56:57]")
                    e("    s_mov_b32 s60, s61")
                    e("    s_mov_b32 s61, s62")
                    e("    s_mov_b32 s62, s63")
                    e("    s_waitcnt lgkmcnt(0)")
                    e("    s_mov_b32 s63, s56")
                    e(f"L_notr{li}:")
                if ck != 32:
                    e("    s_and_b32 s52, s38, 31")
                    e(f"    s_cbranch_scc0 L_ph{li}")
                    e("    s_barrier")
                    e(f"    s_branch L_back{li}")
                    e(f"L_ph{li}:")
                e("    s_cmp_eq_u32 s38, 0")
                e("    s_nop 4")
                e(f"    s_cbranch_scc1 L_zero{li}")
                for i in range(8):
                    e(f"    ds_write_b128 v3, {acc(i)} offset:{i*1024}")
                e("    v_add_u32 v3, 0x2000, v3")
                e("    s_waitcnt lgkmcnt(0)")
                e("    s_barrier")
                e(f"    ds_read_b64 v[{PR}:{PR+1}], v4 offset:1024")
                e(f"    ds_read_b64 v[{PR+2}:{PR+3}], v4 offset:{1024+512}")
                e(f"L_zero{li}:")
                for i in range(32):
                    e(f"    v_mov_b32 v{ACC+i}, 0")
                e(f"L_back{li}:")
        e("    s_add_u32 s38, s38, 1")
        if two:
            e("    s_add_u32 s54, s54, s59")
            e("    s_bitcmp1_b32 s54, 7")
            e("    s_cselect_b64 vcc, -1, 0")
            e("    s_and_b32 s54, s54, 127")
            if boost_it < 128:
                e(f"    s_cmp_ge_u32 s38, {boost_it}")
                e("    s_cselect_b64 vcc, -1, vcc")
        elif duty:
            e("    s_add_u32 s54, s54, s59")
            e("    s_lshr_b32 s58, s54, 7")
            e("    s_and_b32 s54, s54, 127")
        if li == NL - 1:
            e("L_dispatch:")
            if boost_it < 128 and not two:
                e(f"    s_cmp_ge_u32 s38, {boost_it}")
                e(f"    s_cselect_b32 s58, {NL-1}, s58")
            e("    s_cmp_ge_u32 s38, 128")
            e("    s_cbranch_scc1 L_done")
            for lj in range(NL - 1):
                e(f"    s_cmp_eq_u32 s58, {lj}")
                e(f"    s_cbranch_scc1 L_loop{lj}")
            e(f"    s_branch L_loop{NL-1}")
        else:
            e(f"    s_cmp_ge_u32 s38, {min(boost_it,128)}")
            e("    s_cbranch_scc1 L_dispatch")
            e(f"    s_cmp_eq_u32 s58, {li}")
            e(f"    s_cbranch_scc1 L_loop{li}")
            e("    s_branch L_dispatch")
    e("L_done:")
    if trace:
        e("    s_memrealtime s[56:57]")
        e("    s_waitcnt lgkmcnt(0)")
        e("    v_writelane_b32 v0, s56, 4")
        for i in range(4):
            e(f"    v_writelane_b32 v0, s{60+i}, {i}")
        if strace:
            for i in range(5):
                e(f"    v_writelane_b32 v0, s{64+2*i}, {i}")
    e("    s_waitcnt lgkmcnt(0)")
    for ee in range(8):
        e(f"    v_mfma_f32_16x16x32_bf16 {acc(ee)}, {Eq(1)}, {Tq(1,ee)}, {acc(ee)}")
    e("    s_waitcnt vmcnt(0)")
    e("    s_branch L_vepi")

    e("L_helper:")
    QB, KP, KA, S = 72, 104, 120, 136
    NCK = 128 // ck - 1
    PER = 32 // ck
    e("    s_add_u32 s28, s4, s52                 ; q SRD")
    e("    s_addc_u32 s29, s5, 0")
    e("    s_mov_b32 s30, 0x4000")
    e("    s_mov_b32 s31, 0x00020000")
    e("    v_mul_u32_u24 v1, 1088, v6")
    e("    v_lshl_add_u32 v1, v5, 4, v1")
    e(f"    v_add_u32 v1, {KB}, v1")
    e("    v_mul_u32_u24 v145, 272, v5")
    e("    v_lshl_add_u32 v145, v6, 6, v145")
    e(f"    v_add_u32 v145, {KB}, v145")
    e("    v_mov_b32 v144, v4")
    e(f"    v_add_u32 v146, {QL}, v7")
    e("    v_mov_b32 v147, 0")
    e("    v_mov_b32 v148, 1")
    e("    s_mov_b32 s48, 0x3db504f3              ; 128^-0.5")
    e("    s_mov_b32 s49, 0x3fb8aa3b              ; log2(e)")
    e("    s_mov_b32 s42, 0                       ; q soffset")
    e("    s_mov_b32 s38, 0                       ; checkpoint")
    if pi:
        e(f"    s_mov_b32 s60, {pi[0]}")
        e("    s_mov_b32 s61, 0")
        e("    s_mov_b32 s62, 0")
        e("    s_mov_b32 s55, 0")
        e(f"    v_mov_b32 v151, {float(duty0)!r}")
    e("L_hloop:")
    e(f"    s_cmp_ge_u32 s38, {NCK}")
    e(f"    s_cbranch_scc1 {'L_stamp' if stamp else 'L_end'}")
    e("    s_barrier")
    e("    s_add_u32 s38, s38, 1")
    if fb:
        e("    s_mov_b64 exec, 1")
        if aflags == "scalar":
            e("    s_mov_b32 s52, 1")
            e("    s_lshl_b32 s54, s38, 2")
            e("    s_atomic_add s52, s[16:17], s54 glc")
            e("    s_waitcnt lgkmcnt(0)")
        else:
            e(f"    global_atomic_add v149, v147, v148, s[16:17] {aflags}")
            e("    v_add_u32 v147, 4, v147")
            e("    s_waitcnt vmcnt(0)")
            e("    v_readfirstlane_b32 s52, v149")
        if trace:
            e("    v_mov_b32 v0, s52")
        e("    s_mov_b32 s53, 1")
        e(f"    s_cmp_lt_u32 s52, {fb[0]}")
        e("    s_cselect_b32 s53, 0, s53")
        e(f"    s_cmp_ge_u32 s52, {fb[1]}")
        e("    s_cselect_b32 s53, 2, s53")
        if fbdry:
            e(f"    s_mov_b32 s53, {mode0}")
        e("    v_mov_b32 v149, s53")
        e(f"    ds_write_b32 v{VMA}, v149")
        e("    s_mov_b64 exec, -1")
    if pi:
        c0, step, npi, dl, Kp, Ki = pi
        assert npi * nlead * 4 <= 256 and c0 + (npi - 1) * step + dl <= NCK and dl < step
        e("    s_cmp_lg_u32 s38, s60")
        e("    s_cbranch_scc1 L_pa")
        e("    s_memrealtime s[56:57]")
        e("    s_waitcnt lgkmcnt(0)")
        e("    s_or_b32 s55, s56, 1")
        e(f"    s_cmp_ge_u32 s2, {nlead}")
        e("    s_cbranch_scc1 L_pa")
        e("    s_lshl_b32 s52, s2, 2")
        e("    s_add_u32 s52, s52, s61")
        e("    v_mov_b32 v149, s55")
        e("    v_mov_b32 v147, s52")
        e("    s_mov_b64 exec, 1")
        e("    global_store_dword v147, v149, s[16:17] sc0 sc1")
        e("    s_mov_b64 exec, -1")
        e("L_pa:")
        e(f"    s_add_u32 s52, s60, {dl}")
        e("    s_cmp_lg_u32 s38, s52")
        e("    s_cbranch_scc1 L_pb")
        e("    v_lshrrev_b32 v147, 2, v2              ; lane*4")
        e(f"    v_and_b32 v147, {nlead*4-1}, v147")
        e("    v_add_u32 v147, s61, v147")
        e(f"    global_load_dword v149, v147, s[16:17] {rflags}")
        e(f"    s_add_u32 s60, s60, {step}")
        e(f"    s_add_u32 s61, s61, {nlead*4}")
        e(f"    s_cmp_ge_u32 s61, {npi*nlead*4}")
        e("    s_cselect_b32 s60, 0x1000, s60")
        e("    s_mov_b32 s52, 0                       ; lane")
        e("    s_mov_b32 s53, 0                       ; sum")
        e("    s_mov_b32 s54, 0                       ; count")
        e("    s_waitcnt vmcnt(0)")
        e("L_pl:")
        e("    v_readlane_b32 s56, v149, s52")
        e("    s_add_u32 s52, s52, 1")
        e("    s_nop 0")
        e("    s_sub_u32 s57, s55, s56")
        e("    s_cmp_lg_u32 s56, 0")
        e("    s_cselect_b32 s57, s57, 0")
        e("    s_addc_u32 s54, s54, 0")
        e("    s_add_u32 s53, s53, s57")
        e(f"    s_cmp_lt_u32 s52, {nlead}")
        e("    s_cbranch_scc1 L_pl")
        if trace:
            e("    s_add_u32 s62, s62, s54")
            e("    v_writelane_b32 v0, s62, 0")
            e("    v_writelane_b32 v0, s53, 1")
        e("    s_max_u32 s54, s54, 1")
        e("    v_cvt_f32_i32 v147, s53")
        e("    v_cvt_f32_u32 v149, s54")
        e("    v_rcp_f32 v149, v149")
        e("    s_nop 0")
        e("    v_mul_f32 v147, v147, v149")
        e(f"    v_mul_f32 v149, {float(Ki)/256.0!r}, v147")
        e("    v_add_f32 v151, v151, v149")
        e("    v_max_f32 v151, 0, v151")
        e("    v_min_f32 v151, 0x43000000, v151")
        e(f"    v_mul_f32 v147, {float(Kp)/256.0!r}, v147")
        e("    v_add_f32 v147, v147, v151")
        e("    v_cvt_i32_f32 v150, v147")
        e("    v_max_i32 v150, 0, v150")
        e("    v_min_i32 v150, 0x80, v150")
        e(f"    ds_write_b32 v{VMA}, v150")
        e("    s_waitcnt lgkmcnt(0)")
        e("L_pb:")
    elif ctl:
        cA, cB, dl, gA, gB = ctl
        for k, (cc, gn) in enumerate(((cA, gA), (cB, gB))):
            e(f"    s_cmp_lg_u32 s38, {cc}")
            e(f"    s_cbranch_scc1 L_c{k}a")
            e("    s_memrealtime s[56:57]")
            e("    s_waitcnt lgkmcnt(0)")
            e("    s_or_b32 s55, s56, 1")
            e(f"    s_cmp_ge_u32 s2, {nlead}")
            e(f"    s_cbranch_scc1 L_c{k}a")
            e("    s_lshl_b32 s52, s2, 2")
            e("    v_mov_b32 v149, s55")
            e("    v_mov_b32 v147, s52")
            e("    s_mov_b64 exec, 1")
            e(f"    global_store_dword v147, v149, s[16:17] offset:{128*k} sc0 sc1")
            e("    s_mov_b64 exec, -1")
            e(f"L_c{k}a:")
            e(f"    s_cmp_lg_u32 s38, {cc+dl}")
            e(f"    s_cbranch_scc1 L_c{k}b")
            e("    v_lshrrev_b32 v147, 2, v2              ; lane*4")
            e("    v_and_b32 v147, 127, v147")
            e(f"    global_load_dword v149, v147, s[16:17] offset:{128*k} sc1")
            e(f"    ds_read_b32 v150, v{VMA}")
            e("    s_mov_b32 s52, 0                       ; lane")
            e("    s_mov_b32 s53, 0                       ; sum")
            e("    s_mov_b32 s54, 0                       ; count")
            e("    s_waitcnt vmcnt(0) lgkmcnt(0)")
            e(f"L_c{k}l:")
            e("    v_readlane_b32 s56, v149, s52")
            e("    s_add_u32 s52, s52, 1")
            e("    s_nop 0")
            e("    s_sub_u32 s57, s55, s56")
            e("    s_cmp_lg_u32 s56, 0")
            e("    s_cselect_b32 s57, s57, 0")
            e("    s_addc_u32 s54, s54, 0")
            e("    s_add_u32 s53, s53, s57")
            e(f"    s_cmp_lt_u32 s52, {nlead}")
            e(f"    s_cbranch_scc1 L_c{k}l")
            e("    s_max_u32 s54, s54, 1")
            e("    v_cvt_f32_i32 v147, s53")
            e("    v_cvt_f32_u32 v149, s54")
            e("    v_rcp_f32 v149, v149")
            e(f"    v_mul_f32 v147, {float(gn)/256.0!r}, v147")
            e("    v_mul_f32 v147, v147, v149")
            e("    v_cvt_i32_f32 v147, v147")
            e("    v_add_u32 v150, v150, v147")
            e("    v_max_i32 v150, 0, v150")
            e("    v_min_i32 v150, 0x80, v150")
            e(f"    ds_write_b32 v{VMA}, v150")
            if trace:
                e(f"    v_writelane_b32 v0, s53, {2*k}")
                e("    v_readfirstlane_b32 s53, v150")
                e("    s_nop 3")
                e(f"    v_writelane_b32 v0, s53, {2*k+1}")
            e("    s_waitcnt lgkmcnt(0)")
            e(f"L_c{k}b:")
    if PER > 1:
        e(f"    s_and_b32 s52, s38, {PER-1}")
        e("    s_cbranch_scc1 L_hloop")
    e(f"    s_cmp_eq_u32 s38, {3*PER}")
    e("    s_cbranch_scc1 L_hv")
    e(f"    s_mov_b32 m0, {QL}")
    e("    s_add_u32 s43, s42, 0x1000")
    for i in range(4):
        e(f"    buffer_load_dwordx4 v2, s[28:31], s42 offen offset:{i*1024} nt lds")
    e(f"    s_mov_b32 m0, {QL+4096}")
    e("    s_nop 0")
    for i in range(4):
        e(f"    buffer_load_dwordx4 v2, s[28:31], s43 offen offset:{i*1024} nt lds")
    for i in range(8):
        e(f"    ds_read_b128 {acc(i)}, v3 offset:{i*1024}")
    e("    v_add_u32 v3, 0x2000, v3")
    e("    s_waitcnt lgkmcnt(0)")
    for i in range(4):
        for m in range(4):
            e(f"    v_cvt_pk_bf16_f32 v{KP+4*i+m}, v{ACC+8*m+i}, v{ACC+8*m+4+i}")
    for i in range(4):
        e(f"    ds_write_b128 v1, v[{KP+4*i}:{KP+4*i+3}] offset:{i*272}")
    e("    s_waitcnt vmcnt(0) lgkmcnt(0)")
    for s in range(4):
        e(f"    ds_read_b128 v[{KA+4*s}:{KA+4*s+3}], v145 offset:{s*16}")
    for qt in range(2):
        for s in range(4):
            b = QB + 16 * qt + 4 * s
            e(f"    ds_read_b128 v[{b}:{b+3}], v146 offset:{qt*4096+s*16}")
    e("    s_waitcnt lgkmcnt(0)")
    for qt in range(2):
        for s in range(4):
            c = "0" if s == 0 else f"v[{S}:{S+3}]"
            b = QB + 16 * qt + 4 * s
            e(f"    v_mfma_f32_16x16x32_bf16 v[{S}:{S+3}], v[{KA+4*s}:{KA+4*s+3}], v[{b}:{b+3}], {c}")
        e("    s_nop 7")
        t0, t1, m0, m1 = S + 4, S + 5, S + 6, S + 7

        def rnd():
            e(f"    v_cvt_pk_bf16_f32 v{t0}, v{S}, v{S+1}")
            e(f"    v_cvt_pk_bf16_f32 v{t1}, v{S+2}, v{S+3}")
            e(f"    v_lshlrev_b32 v{S}, 16, v{t0}")
            e(f"    v_and_b32 v{S+1}, 0xffff0000, v{t0}")
            e(f"    v_lshlrev_b32 v{S+2}, 16, v{t1}")
            e(f"    v_and_b32 v{S+3}, 0xffff0000, v{t1}")

        def xl(op):
            for sw in ("v_permlane16_swap_b32", "v_permlane32_swap_b32"):
                e(f"    v_mov_b32 v{m1}, v{m0}")
                e("    s_nop 1")
                e(f"    {sw} v{m0}, v{m1}")
                e("    s_nop 1")
                e(f"    {op} v{m0}, v{m0}, v{m1}")
        rnd()
        for i in range(4):
            e(f"    v_mul_f32 v{S+i}, s48, v{S+i}")
        rnd()
        e(f"    v_max_f32 v{m0}, v{S}, v{S+1}")
        e(f"    v_max3_f32 v{m0}, v{m0}, v{S+2}, v{S+3}")
        xl("v_max_f32")
        for i in range(4):
            e(f"    v_sub_f32 v{S+i}, v{S+i}, v{m0}")
        for i in range(4):
            e(f"    v_mul_f32 v{S+i}, s49, v{S+i}")
        for i in range(4):
            e(f"    v_exp_f32 v{S+i}, v{S+i}")
        e("    s_nop 0")
        e(f"    v_add_f32 v{m0}, v{S}, v{S+1}")
        e(f"    v_add_f32 v{m1}, v{S+2}, v{S+3}")
        e(f"    v_add_f32 v{m0}, v{m0}, v{m1}")
        xl("v_add_f32")
        e(f"    v_rcp_f32 v{m0}, v{m0}")
        e("    s_nop 0")
        for i in range(4):
            e(f"    v_mul_f32 v{S+i}, v{S+i}, v{m0}")
        e(f"    v_cvt_pk_bf16_f32 v{t0}, v{S}, v{S+1}")
        e(f"    v_cvt_pk_bf16_f32 v{t1}, v{S+2}, v{S+3}")
        e(f"    ds_write_b64 v144, v[{t0}:{t1}] offset:{qt*512}")
        e("    s_waitcnt lgkmcnt(0)")
    e("    v_add_u32 v144, 0x400, v144")
    e("    s_add_u32 s42, s42, 0x2000")
    e("    s_branch L_hloop")
    e("L_hv:")
    for i in range(8):
        e(f"    ds_read_b128 {acc(i)}, v3 offset:{i*1024}")
    e(f"    ds_read_b64 v[{PR}:{PR+1}], v4")
    e(f"    ds_read_b64 v[{PR+2}:{PR+3}], v4 offset:512")
    e("    s_mov_b32 s42, 0")
    e("    s_waitcnt lgkmcnt(0)")

    e("L_vepi:")
    VA, O1, PK = 152, 168, 200
    e("    s_add_u32 s43, s42, 0x1000")
    e("    s_nop 4")
    for t in range(8):
        e(f"    v_cvt_pk_bf16_f32 v{VA+2*t}, v{ACC+4*t}, v{ACC+4*t+1}")
        e(f"    v_cvt_pk_bf16_f32 v{VA+2*t+1}, v{ACC+4*t+2}, v{ACC+4*t+3}")
    e("    s_nop 1")
    for t in range(8):
        e(f"    v_mfma_f32_16x16x16_bf16 v[{ACC+4*t}:{ACC+4*t+3}], v[{VA+2*t}:{VA+2*t+1}], v[{PR}:{PR+1}], 0")
    for t in range(8):
        e(f"    v_mfma_f32_16x16x16_bf16 v[{O1+4*t}:{O1+4*t+3}], v[{VA+2*t}:{VA+2*t+1}], v[{PR+2}:{PR+3}], 0")
    for i in range(4):
        for m in range(4):
            e(f"    v_cvt_pk_bf16_f32 v{PK+4*i+m}, v{ACC+8*m+i}, v{ACC+8*m+4+i}")
        e(f"    buffer_store_dwordx4 v[{PK+4*i}:{PK+4*i+3}], v7, s[32:35], s42 offen offset:{i*16} {oflags}".rstrip())
    for i in range(4):
        for m in range(4):
            e(f"    v_cvt_pk_bf16_f32 v{ACC+4*i+m}, v{O1+8*m+i}, v{O1+8*m+4+i}")
        e(f"    buffer_store_dwordx4 v[{ACC+4*i}:{ACC+4*i+3}], v7, s[32:35], s43 offen offset:{i*16} {oflags}".rstrip())
    if PER > 1:
        e("    s_cmp_lg_u32 s3, 0")
        e("    s_cbranch_scc1 L_hloop")
    if stamp:
        e("L_stamp:")
        e("    s_memrealtime s[48:49]")
        e("    s_getreg_b32 s50, hwreg(HW_REG_HW_ID)")
        e("    s_getreg_b32 s51, hwreg(HW_REG_XCC_ID)")
        e("    s_lshl_b32 s52, s2, 6")
        e("    s_lshr_b32 s53, s3, 1")
        e("    s_add_u32 s52, s52, s53")
        e("    s_waitcnt lgkmcnt(0)")
        e("    v_mov_b32 v40, s46")
        e("    v_mov_b32 v41, s47")
        e("    v_mov_b32 v42, s48")
        e("    v_mov_b32 v43, s49")
        e("    v_mov_b32 v44, s50")
        e("    v_mov_b32 v45, s51")
        e("    v_mov_b32 v46, s52")
        e("    s_mov_b64 exec, 1")
        e("    global_store_dwordx4 v46, v[40:43], s[18:19]")
        e("    global_store_dwordx2 v46, v[44:45], s[18:19] offset:16")
        if trace:
            e("    s_mov_b64 exec, 0xff")
            e("    v_mbcnt_lo_u32_b32 v47, -1, 0")
            e("    v_lshlrev_b32 v47, 2, v47")
            e("    s_add_u32 s52, s52, 0x10000")
            e("    v_add_u32 v47, s52, v47")
            e("    global_store_dword v47, v0, s[18:19]")
    e("L_end:")
    e("    s_endpgm")
    e('.section .rodata,"a"')
    e(".p2align 6")
    e(f".amdhsa_kernel {NAME}_kernel")
    e(f"  .amdhsa_next_free_vgpr {NV}")
    e("  .amdhsa_next_free_sgpr 80")
    e(f"  .amdhsa_accum_offset {(NV+3)//4*4}")
    e("  .amdhsa_group_segment_fixed_size 0")
    e("  .amdhsa_kernarg_size 64")
    e("  .amdhsa_user_sgpr_count 2")
    e("  .amdhsa_user_sgpr_kernarg_segment_ptr 1")
    e("  .amdhsa_system_sgpr_workgroup_id_x 1")
    e("  .amdhsa_float_denorm_mode_32 3")
    e(".end_amdhsa_kernel")
    return "\n".join(o) + "\n"


def ints(s):
    return tuple(int(x) for x in s.split(",")) if s else None


if __name__ == "__main__":
    ap = argparse.ArgumentParser()
    ap.add_argument("-L", type=int, default=15)
    ap.add_argument("--levels", default="18,28")
    ap.add_argument("--mode0", type=int, default=0)
    ap.add_argument("--boost", type=int, default=128)
    ap.add_argument("--ck", type=int, default=32)
    ap.add_argument("--fb", default=None)
    ap.add_argument("--fbdry", action="store_true")
    ap.add_argument("--aflags", default="sc0 sc1")
    ap.add_argument("--xpar", default=None)
    ap.add_argument("--npro", type=int, default=None)
    ap.add_argument("--oflags", default="")
    ap.add_argument("--stamp", action="store_true")
    ap.add_argument("--trace", action="store_true")
    ap.add_argument("--ahead", type=int, default=20)
    ap.add_argument("--first", type=int, default=3)
    ap.add_argument("--duty", default=None)
    ap.add_argument("--strace", action="store_true")
    ap.add_argument("--two", default=None)
    ap.add_argument("--duty0", type=int, default=58)
    ap.add_argument("--ctl", default=None)
    ap.add_argument("--nlead", type=int, default=32)
    ap.add_argument("--pi", default=None)
    ap.add_argument("--rflags", default="nt")
    ap.add_argument("-o", default="-")
    a = ap.parse_args()
    s = gen(a.L, ints(a.levels), a.mode0, a.boost, a.ck, ints(a.fb), "nt", a.oflags, a.stamp, a.trace, a.ahead,
            a.first, a.fbdry, a.aflags, ints(a.xpar), a.npro, ints(a.duty), a.strace, ints(a.two), a.duty0, ints(a.ctl), a.nlead, ints(a.pi), a.rflags)
    if a.o == "-":
        sys.stdout.write(s)
    else:
        open(a.o, "w").write(s)
```
